```python
import torch

def _softmax(x, axis=-1):
    return torch.softmax(x, dim=axis)

def _gelu(x):
    return torch.nn.functional.gelu(x, approximate='tanh')

def _silu(x):
    return torch.nn.functional.silu(x)

def _sigmoid(x):
    return torch.sigmoid(x)

def _layernorm(x, axis=-1, eps=1e-05):
    m = x.mean(dim=axis, keepdim=True)
    v = x.var(dim=axis, keepdim=True, unbiased=False)
    return (x - m) / torch.sqrt(v + eps)

def _scatter_add(tgt, idx, src, axis=0):
    return tgt.clone().index_add_(axis, idx, src)

def _segment_sum(src, seg, n):
    out = torch.zeros((n,) + src.shape[1:], dtype=src.dtype)
    return out.index_add_(0, seg, src)

def _pad(x, pw):
    flat = tuple((v for pair in reversed(pw) for v in pair))
    return torch.nn.functional.pad(x, flat)
kernel_name = 'adaLN_cond__sliding_local_dilated__glu_gated_bilinear__prompt'

def setup_inputs():

    _w = lambda a: (lambda t: t.to(torch.bfloat16) if t.is_floating_point() else t)(torch.as_tensor(a))

    def _A_setup():
        B, S, D = (1, 2048, 576)
        return {'x': _w((lambda *s: torch.randn(*s, dtype=torch.bfloat16) * 0.05)(B, S, D)), 'wqkv': _w((lambda *s: torch.randn(*s, dtype=torch.bfloat16) * 0.05)(D, 3 * D)), 'wo': _w((lambda *s: torch.randn(*s, dtype=torch.bfloat16) * 0.05)(D, D))}
    _A_in = _A_setup()

    def _B_setup():
        B, S, D, F = (1, 2048, 576, 4608)
        return {'x': _w((lambda *s: torch.randn(*s, dtype=torch.bfloat16) * 0.05)(B, S, D)), 'w_gate': _w((lambda *s: torch.randn(*s, dtype=torch.bfloat16) * 0.8)(D, F) * D ** (-0.5)), 'w_up': _w((lambda *s: torch.randn(*s, dtype=torch.bfloat16) * 0.8)(D, F) * D ** (-0.5)), 'w_down': _w((lambda *s: torch.randn(*s, dtype=torch.bfloat16) * 0.8)(F, D) * F ** (-0.5))}
    _B_in = _B_setup()
    return {'A_x': _A_in['x'], 'A_wqkv': _A_in['wqkv'], 'A_wo': _A_in['wo'], 'B_x': _B_in['x'], 'B_w_gate': _B_in['w_gate'], 'B_w_up': _B_in['w_up'], 'B_w_down': _B_in['w_down'], 'c': _w((lambda *s: torch.randn(*s, dtype=torch.bfloat16) * 0.1)(1, 576) * 8.0), 'w_mod': _w((lambda *s: torch.randn(*s, dtype=torch.bfloat16) * 0.1)(576, 6 * 576) * 576 ** (-0.5) * 8.0)}

def reference(A_x, A_wqkv, A_wo, B_x, B_w_gate, B_w_up, B_w_down, c, w_mod):

    def _A_ref(x, wqkv, wo):
        B, S, D = x.shape
        H = 32
        Dh = D // H
        W, dil = (8, 2)
        qkv = (lambda x, *d: x.permute(*d))((x @ wqkv).reshape(B, S, 3, H, Dh), 2, 0, 3, 1, 4)
        q, k, v = (qkv[0], qkv[1], qkv[2])
        scale = Dh ** (-0.5)
        pos = torch.arange(S)
        off = torch.arange(W) * dil
        idx = pos[:, None] - off[None, :]
        mask = idx >= 0
        idx_c = torch.where(mask, idx, 0).reshape(-1)
        kg = k[:, :, idx_c, :].reshape(B, H, S, W, Dh)
        vg = v[:, :, idx_c, :].reshape(B, H, S, W, Dh)
        logits = torch.einsum('bhsd,bhswd->bhsw', q, kg) * scale
        logits = torch.where(mask[None, None, :, :], logits, -1000000000.0)
        attn = _softmax(logits, axis=-1)
        o = torch.einsum('bhsw,bhswd->bhsd', attn, vg)
        return (lambda x, *d: x.permute(*d))(o, 0, 2, 1, 3).reshape(B, S, D) @ wo

    def _B_ref(x, w_gate, w_up, w_down):
        g = torch.einsum('bsd,df->bsf', x, w_gate)
        u = torch.einsum('bsd,df->bsf', x, w_up)
        h = g * u
        return torch.einsum('bsf,fd->bsd', h, w_down)
    x = A_x
    mod = (_silu(c) @ w_mod).reshape(c.shape[0], 6, 1, -1)
    sa, ca, ga, sb, cb, gb = (mod[:, 0].clone(), mod[:, 1].clone(), mod[:, 2].clone(), mod[:, 3].clone(), mod[:, 4].clone(), mod[:, 5].clone())
    h = _layernorm(x, axis=-1) * (1 + ca) + sa
    x = x + ga * _A_ref(h, A_wqkv, A_wo)
    h = _layernorm(x, axis=-1) * (1 + cb) + sb
    x = x + gb * _B_ref(h, B_w_gate, B_w_up, B_w_down)
    return x
```

```python
import subprocess, sys
sys.path.insert(0, 'cdna_kernels')
NAME = 'adaLN_cond__sliding_local_dilated__glu_gated_bilinear__prompt'
REF = open(f'cdna_kernels/{NAME}.s.ref').read().split('\n')
TOP = [l for l in REF if l.startswith(';') and '@launch' not in l and 'Override' not in l and 'grid=ceil' not in l]

def kd(name, vgpr, accum, sgpr=102):
    return f'''.section .rodata,"a"
.p2align 6
.amdhsa_kernel {name}
  .amdhsa_next_free_vgpr {vgpr}
  .amdhsa_next_free_sgpr {sgpr}
  .amdhsa_accum_offset {accum}
  .amdhsa_group_segment_fixed_size 0
  .amdhsa_kernarg_size 96
  .amdhsa_user_sgpr_count 2
  .amdhsa_user_sgpr_kernarg_segment_ptr 1
  .amdhsa_system_sgpr_workgroup_id_x 1
.end_amdhsa_kernel
.text
'''

def kernel(name, body, vgpr, accum, sgpr=102):
    return f'''.globl {name}
.p2align 8
.type {name},@function
{name}:
{body}
  s_endpgm
''' + kd(name, vgpr, accum, sgpr)

def build(fn, launches, kernels):
    ls = [f'; @launch kernel={k} grid=({g},1,1) block=({b},1,1) lds={l}' for k, g, b, l in launches]
    s = '\n'.join(TOP) + '\n' + '\n'.join(ls) + '\n.amdgcn_target "amdgcn-amd-amdhsa--gfx950"\n.text\n' + '\n'.join(kernels)
    open(fn, 'w').write(s)
    return s

def assemble(fn, check=True):
    from cdna_launch import with_harness_metadata, address_register_problem, launch_list_of, launch_list_kernel_names
    asm = open(fn).read()
    h = with_harness_metadata(asm, NAME + '_kernel', 12, launch_lists=True)
    hf = fn[:-2] + '.harness.s'
    co = fn[:-2] + '.co'
    open(hf, 'w').write(h)
    r = subprocess.run(['clang', '-x', 'assembler', '-target', 'amdgcn-amd-amdhsa', '-mcpu=gfx950', hf, '-o', co], capture_output=True, text=True)
    if r.returncode:
        print(r.stderr[:4000]); raise SystemExit(1)
    if check:
        launches = launch_list_of(asm, True)
        p = address_register_problem(co, NAME + '_kernel', None if launches is None else launch_list_kernel_names(launches))
        if p:
            print(p); raise SystemExit(1)
    return co

def srd(d, lo, nbytes):
    return f'''  s_mov_b32 s{d}, s{lo}
  s_and_b32 s{d+1}, s{lo+1}, 0xffff
  s_mov_b32 s{d+2}, {nbytes}
  s_mov_b32 s{d+3}, 0x20000
'''

STAMP = False
def stamp_init():
    if not STAMP: return ''
    return """  s_load_dwordx2 s[90:91], s[0:1], 80
  s_waitcnt lgkmcnt(0)
""" + srd(92, 90, 256) + """  v_readfirstlane_b32 s88, v0
  s_mov_b32 s89, 0
  s_cmp_eq_u32 s2, 0
  s_cselect_b32 s89, 32, s89
  s_cmp_eq_u32 s2, 101
  s_cselect_b32 s89, 64, s89
  s_cmp_eq_u32 s2, 255
  s_cselect_b32 s89, 96, s89
  s_cmp_lt_u32 s88, 64
  s_cselect_b32 s89, s89, 0
"""
_sc = [0]
def stamp(i, neg=False, vt=88):
    if not STAMP: return ''
    _sc[0] += 1
    n = _sc[0]
    return f"""  s_cmp_eq_u32 s89, 0
  s_cbranch_scc1 Lst{n}
  s_memrealtime s[96:97]
  s_waitcnt lgkmcnt(0)
  v_mov_b32 v{vt}, s96
  v_mov_b32 v{vt+1}, s89
  v_add_u32 v{vt+1}, {4*i - 32}, v{vt+1}
  s_mov_b64 s[98:99], exec
  s_mov_b64 exec, 1
  buffer_store_dword v{vt}, v{vt+1}, s[92:95], 0 offen
  s_mov_b64 exec, s[98:99]
Lst{n}:
"""

def wgmap(a):
    import math
    la = int(math.log2(a)); nx = 8 // a; lnx = int(math.log2(nx))
    return f"""  s_and_b32 s22, s2, 7
  s_lshr_b32 s21, s2, 3
  s_lshr_b32 s23, s22, {lnx}
  s_and_b32 s22, s22, {nx - 1}
  s_lshl_b32 s22, s22, {la}
  s_and_b32 s24, s21, {a - 1}
  s_add_u32 s22, s22, s24
  s_lshr_b32 s21, s21, {la}
  s_lshl_b32 s23, s23, {5 - la}
  s_add_u32 s21, s21, s23
"""
MAP = {'k2': 4, 'k3': 4, 'k4': 1}
STF = {'k1': '', 'k2': '', 'k3': '', 'k4': ''}

def pf_addr(v, t, lreg, nl, per, j0, limit):
    sh = {48: 21, 24: 20, 16: None}[per]; m2 = {6: 43, 3: 86, 2: 128}[nl]
    div = [f'v_lshrrev_b32 v{v}, 4, v{lreg}'] if sh is None else [f'v_mul_u32_u24 v{v}, 43691, v{lreg}', f'v_lshrrev_b32 v{v}, {sh}, v{v}']
    return div + [
            f'v_mul_u32_u24 v{t}, {per}, v{v}', f'v_sub_u32 v{t}, v{lreg}, v{t}',
            f'v_mul_u32_u24 v{v}, 9216, v{v}',
            f'v_mul_u32_u24 v{t+1}, {m2}, v{t}', f'v_lshrrev_b32 v{t+1}, 8, v{t+1}',
            f'v_mul_u32_u24 v{t+2}, {nl}, v{t+1}', f'v_sub_u32 v{t}, v{t}, v{t+2}',
            f'v_mul_u32_u24 v{t+1}, 1152, v{t+1}', f'v_add_u32 v{v}, v{v}, v{t+1}',
            f'v_lshl_add_u32 v{v}, v{t}, 7, v{v}', f'v_add_u32 v{v}, {j0*128}, v{v}',
            f'v_mov_b32 v{t}, 0x7ff00000', f'v_cmp_gt_u32 vcc, {limit}, v{lreg}', f'v_cndmask_b32 v{v}, v{t}, v{v}, vcc']
```

```python
class Op:
    __slots__ = ('text', 'vm', 'lg', 'wvm', 'wlg', 'sid')
    def __init__(self, text, vm=None, lg=None, wvm=None, wlg=None):
        self.text = text; self.vm = vm; self.lg = lg; self.wvm = wvm; self.wlg = wlg; self.sid = None

class Seq:
    def __init__(self): self.ops = []
    def i(self, text): self.ops.append(Op(text))
    def vm(self, text, tag): self.ops.append(Op(text, vm=tag))
    def lg(self, text, tag): self.ops.append(Op(text, lg=tag))
    def wait(self, vm=None, lg=None): self.ops.append(Op(None, wvm=vm, wlg=lg))

def resolve(regions):
    vmq = []; lgq = []
    res = {}
    done_vm = set(); done_lg = set()
    for name, insts in regions:
        n = len(insts[0].ops)
        for s in insts:
            assert len(s.ops) == n, (name, len(s.ops), n)
        best = res.setdefault(name, [None] * n)
        for s in insts:
            for k, op in enumerate(s.ops):
                if op.text is not None:
                    assert best[k] is None or best[k] == op.text, (name, k, best[k], op.text)
                    best[k] = op.text
                    if op.vm is not None: vmq.append(op.vm)
                    if op.lg is not None: lgq.append(op.lg)
                    continue
                nv = nl = None
                if op.wvm is not None:
                    if op.wvm == 'all': nv = 0
                    elif op.wvm in vmq:
                        idx = len(vmq) - 1 - vmq[::-1].index(op.wvm)
                        nv = min(len(vmq) - 1 - idx, 62)
                    else:
                        assert op.wvm in done_vm, ('vm tag never issued', op.wvm)
                        nv = 63
                if op.wlg is not None:
                    if op.wlg == 'all': nl = 0
                    elif op.wlg in lgq:
                        idx = len(lgq) - 1 - lgq[::-1].index(op.wlg)
                        nl = min(len(lgq) - 1 - idx, 14)
                    else:
                        assert op.wlg in done_lg, ('lg tag never issued', op.wlg)
                        nl = 15
                if nv is not None:
                    nv = min(nv, 63)
                    done_vm.update(vmq[:max(0, len(vmq) - nv)]); vmq = vmq[max(0, len(vmq) - nv):]
                if nl is not None:
                    nl = min(nl, 15)
                    done_lg.update(lgq[:max(0, len(lgq) - nl)]); lgq = lgq[max(0, len(lgq) - nl):]
                cur = best[k] or (None, None)
                def mn(a, b): return b if a is None else (a if b is None else min(a, b))
                best[k] = (mn(cur[0], nv), mn(cur[1], nl))
    out = {}
    for name, lst in res.items():
        lines = []
        for x in lst:
            if isinstance(x, tuple):
                parts = []
                if x[0] is not None and x[0] < 63: parts.append(f'vmcnt({x[0]})')
                if x[1] is not None and x[1] < 15: parts.append(f'lgkmcnt({x[1]})')
                if parts: lines.append('  s_waitcnt ' + ' '.join(parts))
            else:
                lines.append('  ' + x)
        out[name] = lines
    return out
```

```python
from common import *
from k4 import WS_MOD, WS_XH, WS_WQ, WS_WO, WS_SIZE, XBYTES
PREFETCH = False
N_LN, N_MOD, N_RQ, N_RO = 64, 108, 168, 60
K1_GRID = N_LN + N_MOD + N_RQ + N_RO

def xsum(a, v, t, steps):
    for st in steps:
        if st in (4, 8):
            a(f'  v_add_f32_dpp v{v}, v{v}, v{v} row_ror:{st} row_mask:0xf bank_mask:0xf')
            a('  s_nop 1')
        else:
            a(f'  v_mov_b32 v{t}, v{v}'); a('  s_nop 1')
            a(f'  v_permlane{st}_swap_b32 v{t}, v{v}'); a('  s_nop 1')
            a(f'  v_add_f32 v{v}, v{t}, v{v}'); a('  s_nop 1')

def gen_k1(name):
    P = []; a = P.append
    a(f'  s_cmp_ge_u32 s2, {K1_GRID}'); a(f'  s_cbranch_scc1 {name}_exit')
    a(stamp_init()); a(stamp(0, vt=2))
    a('  s_load_dwordx2 s[34:35], s[0:1], 88')
    a('  v_lshrrev_b32 v10, 6, v0'); a('  v_and_b32 v1, 63, v0'); a('  v_readfirstlane_b32 s20, v10')
    a(f'  s_cmp_ge_u32 s2, {N_LN + N_MOD}'); a(f'  s_cbranch_scc1 {name}_rp')
    a(f'  s_cmp_ge_u32 s2, {N_LN}'); a(f'  s_cbranch_scc1 {name}_mod')
    a('  s_load_dwordx2 s[4:5], s[0:1], 0')
    a('  s_waitcnt lgkmcnt(0)')
    a(srd(8, 4, XBYTES)); a(srd(16, 34, WS_SIZE))
    a('  s_lshl_b32 s21, s2, 5'); a('  s_lshl_b32 s22, s20, 3'); a('  s_add_u32 s21, s21, s22')
    a('  v_and_b32 v2, 7, v1'); a('  v_lshrrev_b32 v3, 3, v1')
    a('  v_add_u32 v4, s21, v2')
    a('  v_mul_u32_u24 v5, 1152, v4'); a('  v_lshl_add_u32 v5, v3, 4, v5')
    for i in range(9): a(f'  buffer_load_dwordx4 v[{16+4*i}:{16+4*i+3}], v5, s[8:11], 0 offen offset:{i*128}')
    a('  v_lshrrev_b32 v6, 4, v4'); a('  v_mul_u32_u24 v6, 72, v6'); a('  v_add_u32 v6, v6, v3')
    a('  v_lshlrev_b32 v6, 8, v6'); a('  v_and_b32 v7, 15, v4'); a('  v_lshl_add_u32 v6, v7, 4, v6')
    a(f'  v_add_u32 v6, {WS_XH}, v6')
    a('  v_mov_b32 v12, 0'); a('  v_mov_b32 v14, 0x3f803f80')
    for i in range(9):
        a(f'  s_waitcnt vmcnt({8-i})')
        for j in range(4): a(f'  v_dot2c_f32_bf16 v12, v{16+4*i+j}, v14')
    a('  s_nop 2')
    xsum(a, 12, 13, (8, 16, 32))
    a('  v_mul_f32 v12, 0x3ae38e39, v12')
    a('  v_mov_b32 v13, 0')
    for d in range(36):
        a(f'  v_lshlrev_b32 v{64+2*d}, 16, v{16+d}'); a(f'  v_and_b32 v{65+2*d}, 0xffff0000, v{16+d}')
        a(f'  v_sub_f32 v{64+2*d}, v{64+2*d}, v12'); a(f'  v_sub_f32 v{65+2*d}, v{65+2*d}, v12')
        a(f'  v_fmac_f32 v13, v{64+2*d}, v{64+2*d}'); a(f'  v_fmac_f32 v13, v{65+2*d}, v{65+2*d}')
    a('  s_nop 1')
    xsum(a, 13, 15, (8, 16, 32))
    a('  v_mul_f32 v13, 0x3ae38e39, v13'); a('  v_add_f32 v13, 0x3727c5ac, v13'); a('  v_rsq_f32 v13, v13'); a('  s_nop 0')
    for i in range(9):
        for j in range(4):
            d = 4 * i + j
            a(f'  v_mul_f32 v{64+2*d}, v{64+2*d}, v13'); a(f'  v_mul_f32 v{65+2*d}, v{65+2*d}, v13')
            a(f'  v_cvt_pk_bf16_f32 v{16+d}, v{64+2*d}, v{65+2*d}')
        a(f'  s_mov_b32 s23, {i*8*256}')
        a(f'  buffer_store_dwordx4 v[{16+4*i}:{16+4*i+3}], v6, s[16:19], s23 offen')
    a(f'  s_branch {name}_end')
    a(f'{name}_mod:')
    a('  s_load_dwordx4 s[4:7], s[0:1], 56')
    a('  s_waitcnt lgkmcnt(0)')
    a(srd(8, 4, 1152)); a(srd(12, 6, 576 * 6912)); a(srd(16, 34, WS_SIZE))
    a(f'  s_sub_u32 s21, s2, {N_LN}')
    a('  v_lshrrev_b32 v2, 2, v0'); a('  v_and_b32 v3, 3, v0')
    a('  v_lshlrev_b32 v4, 1, v2')
    a('  v_mul_u32_u24 v5, 6912, v2'); a('  v_lshl_add_u32 v5, v3, 4, v5')
    a('  s_lshl_b32 s22, s21, 6')
    for i in range(9):
        a(f'  buffer_load_dwordx4 v[{16+4*i}:{16+4*i+3}], v5, s[12:15], s22 offen')
        if i < 8: a(f'  s_add_u32 s22, s22, {64*6912}')
    for i in range(9): a(f'  buffer_load_ushort v{56+i}, v4, s[8:11], 0 offen offset:{i*128}')
    a('  s_waitcnt vmcnt(0)')
    for i in range(9):
        a(f'  v_lshlrev_b32 v{56+i}, 16, v{56+i}')
        a(f'  v_mul_f32 v70, 0xbfb8aa3b, v{56+i}'); a('  v_exp_f32 v70, v70'); a('  s_nop 0')
        a('  v_add_f32 v70, 1.0, v70'); a('  v_rcp_f32 v70, v70'); a('  s_nop 0')
        a(f'  v_mul_f32 v70, v70, v{56+i}')
        a('  v_cvt_pk_bf16_f32 v70, v70, v70'); a(f'  v_lshlrev_b32 v{56+i}, 16, v70')
    for e in range(8): a(f'  v_mov_b32 v{72+e}, 0')
    for i in range(9):
        for j in range(4):
            a(f'  v_lshlrev_b32 v70, 16, v{16+4*i+j}'); a(f'  v_and_b32 v71, 0xffff0000, v{16+4*i+j}')
            a(f'  v_fmac_f32 v{72+2*j}, v70, v{56+i}'); a(f'  v_fmac_f32 v{73+2*j}, v71, v{56+i}')
    a('  s_nop 1')
    for e in range(8): xsum(a, 72 + e, 70, (4, 8, 16, 32))
    a('  s_lshl_b32 s23, s20, 7'); a('  v_lshl_add_u32 v6, v1, 5, s23')
    a('  v_cmp_gt_u32 vcc, 4, v1'); a('  s_and_saveexec_b64 s[44:45], vcc')
    a('  ds_write_b128 v6, v[72:75]'); a('  ds_write_b128 v6, v[76:79] offset:16')
    a('  s_mov_b64 exec, s[44:45]')
    a('  s_waitcnt lgkmcnt(0)'); a('  s_barrier')
    a('  v_lshlrev_b32 v6, 2, v0')
    a('  v_cmp_gt_u32 vcc, 32, v0'); a('  s_and_saveexec_b64 s[44:45], vcc')
    a(f'  s_cbranch_execz {name}_end')
    for w in range(4): a(f'  ds_read_b32 v{16+w}, v6 offset:{w*128}')
    a('  s_waitcnt lgkmcnt(0)')
    a('  v_add_f32 v16, v16, v17'); a('  v_add_f32 v18, v18, v19'); a('  v_add_f32 v16, v16, v18')
    a('  v_cvt_pk_bf16_f32 v16, v16, v16'); a('  v_lshlrev_b32 v16, 16, v16')
    a('  s_mul_hi_u32 s24, s21, 238609295')
    a('  s_mov_b32 s25, 0')
    a('  s_cmp_eq_u32 s24, 1'); a('  s_cselect_b32 s25, 1.0, s25')
    a('  s_cmp_eq_u32 s24, 4'); a('  s_cselect_b32 s25, 1.0, s25')
    a('  v_add_f32 v16, s25, v16')
    a('  v_cvt_pk_bf16_f32 v16, v16, v16'); a('  v_lshlrev_b32 v16, 16, v16')
    a('  s_lshl_b32 s22, s21, 7'); a(f'  s_add_u32 s22, s22, {WS_MOD}')
    a('  buffer_store_dword v16, v6, s[16:19], s22 offen')
    a(f'  s_branch {name}_end')
    def repack(lbl, ntile, stride, ws):
        a('  s_mul_hi_u32 s22, s21, 715827883')
        a('  s_mul_i32 s23, s22, 6'); a('  s_sub_u32 s23, s21, s23')
        a(f'  s_mul_hi_u32 s24, s22, {(2**32 + ntile - 1) // ntile}')
        a(f'  s_mul_i32 s25, s24, {ntile}'); a('  s_sub_u32 s25, s22, s25')
        a('  v_and_b32 v2, 15, v1'); a('  v_lshrrev_b32 v3, 4, v1')
        a('  s_lshl_b32 s26, s25, 4'); a('  v_add_u32 v2, s26, v2')
        a('  s_mul_i32 s27, s24, 72')
        if ntile == 14:
            a('  v_add_u32 v4, 576, v2')
            a('  v_add_u32 v5, 1080, v2'); a('  v_cmp_le_u32 vcc, 72, v2'); a('  v_cndmask_b32 v4, v4, v5, vcc')
            a('  v_add_u32 v5, -144, v2') if False else a('  v_subrev_u32 v5, 144, v2')
            a('  v_cmp_le_u32 vcc, 144, v2'); a('  v_cndmask_b32 v4, v4, v5, vcc')
            lim = 216
        else:
            a('  v_mov_b32 v4, v2'); lim = 72
        a('  v_add_u32 v4, s27, v4'); a('  v_lshlrev_b32 v4, 1, v4')
        a('  s_mul_i32 s28, s23, 96'); a('  v_lshl_add_u32 v3, v3, 3, s28')
        a(f'  v_mul_u32_u24 v3, {stride}, v3'); a('  v_add_u32 v4, v3, v4')
        a('  v_mov_b32 v5, 0x7ff00000'); a(f'  v_cmp_gt_u32 vcc, {lim}, v2'); a('  v_cndmask_b32 v4, v5, v4, vcc')
        for st in range(3):
            for j in range(8):
                a(f'  s_mov_b32 s29, {(32*st + j) * stride}')
                a(f'  buffer_load_ushort v{16+8*st+j}, v4, s[8:11], s29 offen')
        if PREFETCH:
            a('  s_lshr_b32 s36, s37, 1'); a('  s_mul_i32 s36, s36, 61'); a('  v_add_u32 v60, s36, v1')
            a('  v_mov_b32 v66, 0xffffff'); a('  v_cmp_gt_u32 vcc, 61, v1'); a('  v_cndmask_b32 v60, v66, v60, vcc')
            for x in pf_addr(61, 62, 60, 6, 48, 0, 27648): a('  ' + x)
            a('  buffer_load_dword v66, v61, s[40:43], 0 offen')
        a('  s_mul_i32 s30, s22, 18'); a('  s_mul_i32 s31, s23, 3'); a('  s_add_u32 s30, s30, s31')
        a('  s_lshl_b32 s30, s30, 10'); a(f'  s_add_u32 s30, s30, {ws}')
        a('  v_lshlrev_b32 v9, 4, v1')
        for st in range(3):
            a(f'  s_waitcnt vmcnt({16 - 8*st + st + (1 if PREFETCH else 0)})')
            for j in range(4): a(f'  v_lshl_or_b32 v{48+4*st+j}, v{16+8*st+2*j+1}, 16, v{16+8*st+2*j}')
            a(f'  buffer_store_dwordx4 v[{48+4*st}:{48+4*st+3}], v9, s[16:19], s30 offen offset:{st*1024}')
        a(f'  s_branch {name}_end')
    a(f'{name}_rp:')
    a('  s_load_dwordx4 s[4:7], s[0:1], 8')
    a('  s_load_dwordx4 s[44:47], s[0:1], 32')
    a(f'  s_sub_u32 s21, s2, {N_LN + N_MOD}')
    a('  s_lshl_b32 s37, s21, 2'); a('  s_add_u32 s37, s37, s20')
    a('  s_waitcnt lgkmcnt(0)')
    a('  s_bitcmp1_b32 s37, 0'); a('  s_cselect_b32 s44, s46, s44'); a('  s_cselect_b32 s45, s47, s45')
    a(srd(40, 44, 576 * 9216))
    a(f'  s_cmp_ge_u32 s21, {N_RQ}'); a(f'  s_cbranch_scc1 {name}_ro')
    a('  s_waitcnt lgkmcnt(0)')
    a(srd(8, 4, 576 * 3456)); a(srd(16, 34, WS_SIZE))
    a('  s_lshl_b32 s21, s21, 2'); a('  s_add_u32 s21, s21, s20')
    repack('q', 14, 3456, WS_WQ)
    a(f'{name}_ro:')
    a('  s_waitcnt lgkmcnt(0)')
    a(srd(8, 6, 576 * 1152)); a(srd(16, 34, WS_SIZE))
    a(f'  s_sub_u32 s21, s21, {N_RQ}'); a('  s_lshl_b32 s21, s21, 2'); a('  s_add_u32 s21, s21, s20')
    repack('o', 5, 1152, WS_WO)
    a(f'{name}_end:')
    a(stamp(4, vt=2))
    a(f'{name}_exit:')
    return kernel(name, '\n'.join(P), 144, 144)
```

```python
import common
from common import *
from emit import *
from k4 import WS_MOD, WS_XH, WS_WQ, WS_O, WS_SIZE
ACT = 0
QKV = 90 * 1024
QS = 113 * 4
OST = 0
PREFETCH = True
PF_STEP = 2
PF_N = 1
LDS_K2 = QKV + 80 * QS + 64
TILES = [[0, 1, 9, 10], [2, 3, 11, 12], [4, 5, 6], [7, 8, 13]]
WV = 224
def wreg(slot, s):
    i = slot * 18 + s
    return f'a[{4*i}:{4*i+3}]' if i < 64 else f'v[{WV+4*(i-64)}:{WV+4*(i-64)+3}]'
ACCB = 128
FB = 16

def path(name, nslot, ns):
    S = Seq()
    mrange = lambda slot: range(1, 5) if (nslot == 4 and slot >= 2) else range(5)
    XR = 56; CR = 156
    wl = [(s, slot) for s in range(18) for slot in range(nslot)]
    wi = [0]
    def wload(n):
        for _ in range(n):
            if wi[0] >= len(wl): return
            s, slot = wl[wi[0]]; wi[0] += 1
            S.vm(f'buffer_load_dwordx4 {wreg(slot, s)}, v9, s[16:19], s{40+slot} offen offset:{(s%4)*1024}', ('w', s, slot))
            if s % 4 == 3: S.i(f's_add_u32 s{40+slot}, s{40+slot}, 4096')
    def cload(i):
        c = CR + 16 * (i % 4)
        S.vm(f'buffer_load_dwordx4 v[{c}:{c+3}], v11, s[16:19], s47 offen offset:{i*512}', ('c', i, 0))
        S.vm(f'buffer_load_dwordx4 v[{c+4}:{c+7}], v11, s[16:19], s47 offen offset:{i*512+16}', ('c', i, 1))
        S.vm(f'buffer_load_dwordx4 v[{c+8}:{c+11}], v11, s[16:19], s46 offen offset:{i*512}', ('c', i, 2))
        S.vm(f'buffer_load_dwordx4 v[{c+12}:{c+15}], v11, s[16:19], s46 offen offset:{i*512+16}', ('c', i, 3))
    for i in range(ns):
        if i < 4: cload(i)
        for m in range(5):
            r = XR + 20 * i + 4 * m
            S.vm(f'buffer_load_dwordx4 v[{r}:{r+3}], v9, s[16:19], s{30+m} offen', ('x', i, m))
            S.i(f's_add_u32 s{30+m}, s{30+m}, 4096')
    wload(61 - (ns * 5 + 16))
    for i in range(ns):
        c = CR + 16 * (i % 4)
        S.wait(vm=('x', i, 4))
        if i == 4: S.wait(vm=('c', 4, 3))
        for m in range(5):
            r = XR + 20 * i + 4 * m; t = FB + 12 * (m % 2)
            for j in range(4):
                S.i(f'v_lshlrev_b32 v{t+2*j}, 16, v{r+j}'); S.i(f'v_and_b32 v{t+2*j+1}, 0xffff0000, v{r+j}')
            for j in range(4):
                S.i(f'v_pk_fma_f32 v[{t+2*j}:{t+2*j+1}], v[{t+2*j}:{t+2*j+1}], v[{c+2*j}:{c+2*j+1}], v[{c+8+2*j}:{c+8+2*j+1}]')
            for j in range(4): S.i(f'v_cvt_pk_bf16_f32 v{t+8+j}, v{t+2*j}, v{t+2*j+1}')
            S.lg(f'ds_write_b128 v10, v[{t+8}:{t+11}] offset:{m*18*1024 - 0}' if m < 4 else f'ds_write_b128 v12, v[{t+8}:{t+11}]', ('hw', i, m))
        S.i('v_add_u32 v10, 4096, v10'); S.i('v_add_u32 v12, 4096, v12')
        if i == 0 and ns == 5: cload(4)
        wload(9)
    S.wait(lg='all'); S.i('s_barrier')
    if common.STAMP: S.i(stamp(1))
    def rd(s):
        for m in range(5):
            f = FB + 20 * (s % 2) + 4 * m
            v, o = ('v13', (m * 18 + s) * 1024) if m < 3 else ('v14', ((m - 3) * 18 + s) * 1024)
            S.lg(f'ds_read_b128 v[{f}:{f+3}], {v} offset:{o}', ('f', s, m))
    rd(0)
    pf_done = [not PREFETCH]
    for s in range(18):
        wload(4)
        if s >= PF_STEP and not pf_done[0]:
            assert wi[0] >= len(wl)
            pf_done[0] = True
            for q in range(PF_N): S.vm(f'buffer_load_dword v7, v4, s[{60+4*q}:{63+4*q}], 0 offen', ('pf', q))
        first = True
        for slot in range(nslot):
            S.wait(vm=('w', s, slot))
            for m in mrange(slot):
                if slot == 0: S.wait(lg=('f', s, m))
                c = ACCB + 20 * slot + 4 * m; f = FB + 20 * (s % 2) + 4 * m
                S.i(f'v_mfma_f32_16x16x32_bf16 v[{c}:{c+3}], {wreg(slot, s)}, v[{f}:{f+3}], ' + ('0' if s == 0 else f'v[{c}:{c+3}]'))
            if slot == 0 and s + 1 < 18: rd(s + 1)
    S.i('s_nop 7')
    for slot in range(nslot):
        for m in mrange(slot):
            c = ACCB + 20 * slot + 4 * m
            S.i(f'v_cvt_pk_bf16_f32 v{c}, v{c}, v{c+1}'); S.i(f'v_cvt_pk_bf16_f32 v{c+1}, v{c+2}, v{c+3}')
            S.i(f'v_add_u32 v15, s{50+slot}, v8')
            S.lg(f'ds_write2_b32 v15, v{c}, v{c+1} offset0:0 offset1:1' if m == 0 else f'ds_write2_b32 v15, v{c}, v{c+1} offset0:0 offset1:1', ('q', slot, m))
            S.i(f's_add_u32 s{50+slot}, s{50+slot}, {16*QS}')

    S.wait(lg='all')
    r = resolve([('p', [S])])
    return '\n'.join(r['p'])

def gen_k2(name):
    P = []; a = P.append
    a('  s_cmp_ge_u32 s2, 256'); a(f'  s_cbranch_scc1 {name}_end')
    a(stamp_init()); a(stamp(0, vt=2))
    a('  s_load_dwordx2 s[34:35], s[0:1], 88')
    a('  s_load_dwordx4 s[4:7], s[0:1], 32')
    a('  v_lshrrev_b32 v10, 6, v0'); a('  v_and_b32 v1, 63, v0'); a('  v_readfirstlane_b32 s20, v10')
    a(wgmap(common.MAP['k2']))
    a('  s_waitcnt lgkmcnt(0)')
    a(srd(16, 34, WS_SIZE))
    a('  v_lshlrev_b32 v9, 4, v1')
    if PREFETCH:
        a('  s_cmp_ge_u32 s20, 2'); a('  s_cselect_b32 s4, s6, s4'); a('  s_cselect_b32 s5, s7, s5')
        a(srd(60, 4, 576 * 9216))
        a('  s_mul_i32 s23, s2, 36'); a('  s_and_b32 s24, s20, 1'); a('  s_mul_i32 s24, s24, 18'); a('  s_add_u32 s23, s23, s24')
        a('  v_add_u32 v5, s23, v1'); a('  v_mov_b32 v6, 0xffffff'); a('  v_cmp_gt_u32 vcc, 18, v1'); a('  v_cndmask_b32 v5, v6, v5, vcc')
        for x in pf_addr(4, 16, 5, 2, 16, 0, 9216): a('  ' + x)
    for m in range(5):
        a(f'  s_lshl_b32 s23, s21, 2'); a(f'  s_add_i32 s23, s23, {m-1}'); a('  s_max_i32 s23, s23, 0')
        a('  s_mul_i32 s23, s23, 18'); a('  s_add_u32 s23, s23, s20'); a('  s_lshl_b32 s23, s23, 10')
        a(f'  s_add_u32 s{30+m}, s23, {WS_XH}')
    a('  v_lshrrev_b32 v11, 4, v1'); a('  v_lshlrev_b32 v11, 5, v11')
    a('  s_lshl_b32 s23, s20, 7')
    a(f'  s_add_u32 s46, s23, {WS_MOD}'); a(f'  s_add_u32 s47, s23, {WS_MOD + 2304}')
    a('  s_lshl_b32 s23, s20, 10'); a(f'  s_add_u32 s23, s23, {ACT}'); a('  v_add_u32 v10, s23, v9')
    a(f'  v_add_u32 v12, {4*18*1024}, v10')
    a(f'  v_add_u32 v13, {ACT}, v9'); a(f'  v_add_u32 v14, {ACT + 3*18*1024}, v9')
    a('  v_and_b32 v8, 15, v1'); a(f'  v_mul_u32_u24 v8, {QS}, v8'); a('  v_lshrrev_b32 v15, 4, v1'); a('  v_lshl_add_u32 v8, v15, 3, v8')
    for w in range(4):
        if w: a(f'{name}_t{w}:')
        if w < 3:
            a(f'  s_cmp_lg_u32 s20, {w}'); a(f'  s_cbranch_scc1 {name}_t{w+1}')
        for slot, t in enumerate(TILES[w]):
            a(f'  s_mul_i32 s23, s22, {14*18*1024}'); a(f'  s_add_u32 s{40+slot}, s23, {WS_WQ + t*18*1024}')
            m0 = 1 if (w < 2 and slot >= 2) else 0
            a(f'  s_mov_b32 s{50+slot}, {QKV + t*32 + m0*16*QS}')
        a(f'  s_branch {name}_p{"A" if w < 2 else "B"}')
    a(f'{name}_pA:'); a(path(name, 4, 5)); a(f'  s_branch {name}_att')
    a(f'{name}_pB:'); a(path(name, 3, 4))
    a(f'{name}_att:')
    a('  s_barrier')
    a(stamp(2, vt=2))
    K, V, Q = 16, 88, 160
    a(f'  v_mul_u32_u24 v2, {QS}, v1'); a('  s_mul_i32 s23, s20, 36'); a(f'  s_add_u32 s23, s23, {QKV}'); a('  v_add_u32 v2, s23, v2')
    def rd9(dst, v, o):
        for i in range(4): a(f'  ds_read2_b32 v[{dst+2*i}:{dst+2*i+1}], {v} offset0:{o+2*i} offset1:{o+2*i+1}')
        a(f'  ds_read_b32 v{dst+8}, {v} offset:{4*(o+8)}')
    a(f'  v_add_u32 v3, {16*QS}, v2'); rd9(Q, 'v3', 72)
    for j in range(8): a(f'  v_add_u32 v{170+j}, {(16-2*j)*QS}, v2')
    for j in range(8): rd9(K + 9*j + (j % 2 * 0), f'v{170+j}', 0) if False else None
    KR = lambda j: 16 + 10 * j
    VR = lambda j: 96 if False else 0
    K0, V0 = 16, 180
    def kr(j): return K0 + 10 * j
    def vr(j): return (96 + 10 * j) if j < 6 else (180 + 10 * (j - 6))
    for j in range(8): rd9(kr(j), f'v{170+j}', 0)
    for j in range(8): rd9(vr(j), f'v{170+j}', 36)
    a('  s_lshl_b32 s23, s21, 6'); a('  v_add_u32 v4, s23, v1')
    L = 200
    for j in range(8):
        a(f'  s_waitcnt lgkmcnt({min(15, 5*(7-j) + 40)})') if False else None
    a('  s_waitcnt lgkmcnt(0)')
    for j in range(8): a(f'  v_mov_b32 v{L+j}, 0')
    for i in range(9):
        for j in range(8): a(f'  v_dot2c_f32_bf16 v{L+j}, v{Q+i}, v{kr(j)+i}')
    a('  s_nop 2')
    a('  v_mov_b32 v5, 0xf149f2ca')
    for j in range(1, 8):
        a(f'  v_cmp_le_u32 vcc, {2*j}, v4'); a(f'  v_cndmask_b32 v{L+j}, v5, v{L+j}, vcc')
    a(f'  v_max3_f32 v6, v{L}, v{L+1}, v{L+2}'); a(f'  v_max3_f32 v6, v6, v{L+3}, v{L+4}')
    a(f'  v_max3_f32 v6, v6, v{L+5}, v{L+6}'); a(f'  v_max_f32 v6, v6, v{L+7}')
    sc = 18 ** -0.5 * 1.4426950408889634
    import struct
    a(f'  s_mov_b32 s24, {struct.unpack("<I", struct.pack("<f", sc))[0]}')
    for j in range(8):
        a(f'  v_sub_f32 v{L+j}, v{L+j}, v6'); a(f'  v_mul_f32 v{L+j}, s24, v{L+j}'); a(f'  v_exp_f32 v{L+j}, v{L+j}')
    a('  s_nop 0')
    a(f'  v_add_f32 v6, v{L}, v{L+1}')
    for j in range(2, 8): a(f'  v_add_f32 v6, v6, v{L+j}')
    a('  v_rcp_f32 v6, v6'); a('  s_nop 0')
    for j in range(8): a(f'  v_mul_f32 v{L+j}, v{L+j}, v6')
    for p in range(4): a(f'  v_cvt_pk_bf16_f32 v{L+8+p}, v{L+2*p}, v{L+2*p+1}')
    O = 16
    for d in range(18): a(f'  v_mov_b32 v{O+d}, 0')
    a('  s_mov_b32 s25, 0x05040100'); a('  s_mov_b32 s26, 0x07060302')
    for p in range(4):
        for i in range(9):
            t = 40 + 2 * (i % 4)
            a(f'  v_perm_b32 v{t}, v{vr(2*p+1)+i}, v{vr(2*p)+i}, s25'); a(f'  v_perm_b32 v{t+1}, v{vr(2*p+1)+i}, v{vr(2*p)+i}, s26')
            a(f'  v_dot2c_f32_bf16 v{O+2*i}, v{t}, v{L+8+p}'); a(f'  v_dot2c_f32_bf16 v{O+2*i+1}, v{t+1}, v{L+8+p}')
    a('  s_nop 2')
    for i in range(9): a(f'  v_cvt_pk_bf16_f32 v{50+i}, v{O+2*i}, v{O+2*i+1}')
    a('  v_mul_u32_u24 v2, 148, v1'); a('  s_mul_i32 s23, s20, 36'); a(f'  s_add_u32 s23, s23, {OST}'); a('  v_add_u32 v2, s23, v2')
    for i in range(4): a(f'  ds_write2_b32 v2, v{50+2*i}, v{51+2*i} offset0:{2*i} offset1:{2*i+1}')
    a('  ds_write_b32 v2, v58 offset:32')
    a('  s_waitcnt lgkmcnt(0)'); a('  s_barrier')
    a(stamp(3, vt=2))
    a('  v_and_b32 v2, 15, v1'); a('  v_lshrrev_b32 v3, 4, v1')
    a('  s_lshl_b32 s23, s20, 4'); a('  v_add_u32 v4, s23, v2'); a('  v_mul_u32_u24 v4, 148, v4'); a('  v_lshl_add_u32 v4, v3, 4, v4')
    a(f'  v_add_u32 v4, {OST}, v4')
    for i in range(3):
        a(f'  ds_read2_b32 v[{16+4*i}:{17+4*i}], v4 offset0:{16*i} offset1:{16*i+1}')
        a(f'  ds_read2_b32 v[{18+4*i}:{19+4*i}], v4 offset0:{16*i+2} offset1:{16*i+3}')
    a('  s_lshl_b32 s23, s21, 2'); a('  s_add_u32 s23, s23, s20'); a('  s_mul_i32 s23, s23, 72')
    a('  s_mul_i32 s24, s22, 9'); a('  s_add_u32 s23, s23, s24'); a('  s_lshl_b32 s23, s23, 8'); a(f'  s_add_u32 s23, s23, {WS_O}')
    a('  v_lshlrev_b32 v5, 4, v2'); a('  v_lshl_add_u32 v5, v3, 8, v5')
    a('  v_mov_b32 v6, 0x7ff00000'); a('  v_cmp_gt_u32 vcc, 16, v1'); a('  v_cndmask_b32 v6, v6, v5, vcc')
    a('  s_waitcnt lgkmcnt(0)')
    a('  buffer_store_dwordx4 v[16:19], v5, s[16:19], s23 offen' + common.STF['k2'])
    a('  buffer_store_dwordx4 v[20:23], v5, s[16:19], s23 offen offset:1024' + common.STF['k2'])
    a('  buffer_store_dwordx4 v[24:27], v6, s[16:19], s23 offen offset:2048' + common.STF['k2'])
    a(stamp(4, vt=2))
    a(f'{name}_end:')
    return kernel(name, '\n'.join(P), 512, 256)
```

```python
import common
from common import *
from emit import *
from k4 import WS_MOD, WS_WO, WS_O, WS_X1, WS_SIZE, XBYTES
PF_WD = False
PF_WD_STEP = 12
LDS_K3 = 90 * 1024
def gen_k3(name):
    P = []; a = P.append
    a('  s_cmp_ge_u32 s2, 256'); a(f'  s_cbranch_scc1 {name}_end')
    a(stamp_init()); a(stamp(0, vt=2))
    a('  s_load_dwordx2 s[34:35], s[0:1], 88'); a('  s_load_dwordx2 s[4:5], s[0:1], 0'); a('  s_load_dwordx2 s[6:7], s[0:1], 48')
    a('  v_lshrrev_b32 v10, 6, v0'); a('  v_and_b32 v1, 63, v0'); a('  v_readfirstlane_b32 s20, v10')
    a(wgmap(common.MAP['k3']))
    a('  s_waitcnt lgkmcnt(0)')
    a(srd(16, 34, WS_SIZE)); a(srd(8, 4, XBYTES))
    a('  v_lshlrev_b32 v9, 4, v1')
    if PF_WD:
        a(srd(60, 6, 576 * 4608 * 2))
        a('  s_mul_i32 s23, s2, 162'); a('  v_add_u32 v14, s23, v0'); a('  v_lshlrev_b32 v14, 7, v14')
        a('  v_mov_b32 v15, 0x7ff00000'); a('  v_cmp_gt_u32 vcc, 162, v0'); a('  v_cndmask_b32 v14, v15, v14, vcc')
    a(f'  s_mul_i32 s23, s22, {90*1024}'); a(f'  s_add_u32 s23, s23, {WS_WO}')
    a(f'  s_mul_i32 s24, s20, {18*1024}')
    a('  s_add_u32 s25, s20, 4'); a('  s_min_u32 s25, s25, 5')
    a('  s_lshl_b32 s26, s20, 10'); a('  s_lshl_b32 s25, s25, 10')
    a(f'  s_add_u32 s26, s26, {4*18*1024}'); a(f'  s_add_u32 s25, s25, {4*18*1024}')
    a('  s_lshl_b32 s27, s21, 2'); a('  s_add_u32 s27, s27, s20')
    a(f'  s_mul_i32 s28, s27, {18*1024}'); a(f'  s_add_u32 s28, s28, {WS_O}')
    S = Seq()
    OB = 16; ACC = 96; FR = 120
    def dma(lds, ph, imm, tag):
        S.vm(f'buffer_load_dwordx4 v9, s[16:19], s30 offen offset:{imm} lds', tag)
    for ph in range(3):
        for (sb, extra, n) in (('s24', 0, 4), ('s24', 4096, 2), ('s26', 0, 1), ('s25', 0, 1)):
            S.i(f's_add_u32 m0, {sb}, {ph*6*1024 + extra}')
            S.i('s_add_u32 s30, m0, s23')
            for k in range(n): dma(sb, ph, k * 1024, ('d', ph))
        for s in range(6 * ph, 6 * ph + 6):
            S.vm(f'buffer_load_dwordx4 v[{OB+4*s}:{OB+4*s+3}], v9, s[16:19], s28 offen offset:{(s%4)*1024}', ('o', s))
            if s % 4 == 3: S.i('s_add_u32 s28, s28, 4096')
    S.i('v_and_b32 v2, 15, v1'); S.i('v_lshrrev_b32 v3, 4, v1')
    S.i('s_lshl_b32 s29, s27, 4'); S.i('v_add_u32 v4, s29, v2'); S.i('v_mul_u32_u24 v4, 1152, v4')
    S.i('v_lshl_add_u32 v4, v3, 3, v4'); S.i('s_mul_i32 s31, s22, 144')
    for t in range(5): S.vm(f'buffer_load_dwordx2 v[{160+2*t}:{161+2*t}], v4, s[8:11], s31 offen offset:{t*32}', ('x', t))
    S.i('v_lshlrev_b32 v5, 4, v3'); S.i('s_mul_i32 s32, s22, 288'); S.i(f's_add_u32 s32, s32, {WS_MOD + 2*2304}')
    for t in range(5): S.vm(f'buffer_load_dwordx4 v[{172+4*t}:{172+4*t+3}], v5, s[16:19], s32 offen offset:{t*64}', ('g', t))
    S.i('v_add_u32 v12, 36864, v9'); S.i('v_add_u32 v13, 73728, v9')
    def rd(s):
        for t in range(5):
            f = FR + 20 * (s % 2) + 4 * t
            v, o = [('v9', 0), ('v9', 18), ('v12', 0), ('v12', 18), ('v13', 0)][t]
            S.lg(f'ds_read_b128 v[{f}:{f+3}], {v} offset:{(o+s)*1024}', ('f', s, t))
    for s in range(18):
        if s % 6 == 0:
            S.wait(vm=('o', s + 5) if False else ('d', s // 6))
            S.i('s_barrier')
            if s == 0 and common.STAMP: S.i(stamp(1, vt=2))
            rd(s)
            if s == PF_WD_STEP and PF_WD:
                S.vm('buffer_load_dword v15, v14, s[60:63], 0 offen', ('pf', 0))
        S.wait(vm=('o', s))
        for t in range(5):
            S.wait(lg=('f', s, t))
            c = ACC + 4 * t; f = FR + 20 * (s % 2) + 4 * t
            S.i(f'v_mfma_f32_16x16x32_bf16 v[{c}:{c+3}], v[{f}:{f+3}], v[{OB+4*s}:{OB+4*s+3}], ' + ('0' if s == 0 else f'v[{c}:{c+3}]'))
            if t == 0 and (s + 1) % 6: rd(s + 1)
    S.i('s_lshr_b32 s33, s27, 1'); S.i('s_mul_i32 s33, s33, 72'); S.i('s_mul_i32 s36, s22, 9'); S.i('s_add_u32 s33, s33, s36')
    S.i('s_lshl_b32 s33, s33, 9'); S.i('s_and_b32 s36, s20, 1'); S.i('s_lshl_b32 s36, s36, 8'); S.i('s_add_u32 s33, s33, s36')
    S.i(f's_add_u32 s33, s33, {WS_X1}')
    S.i('v_lshrrev_b32 v6, 1, v3'); S.i('v_lshlrev_b32 v6, 9, v6'); S.i('v_lshl_add_u32 v6, v2, 4, v6')
    S.i('v_and_b32 v7, 1, v3'); S.i('v_lshl_add_u32 v6, v7, 3, v6')
    S.i('v_mov_b32 v7, 0x7ff00000'); S.i('v_cmp_gt_u32 vcc, 32, v1'); S.i('v_cndmask_b32 v7, v7, v6, vcc')
    S.wait(vm=('g', 4))
    S.i('s_nop 4')
    for t in range(5):
        c = ACC + 4 * t; x = 160 + 2 * t; g = 172 + 4 * t
        for h in range(2):
            S.i(f'v_lshlrev_b32 v10, 16, v{x+h}'); S.i(f'v_and_b32 v11, 0xffff0000, v{x+h}')
            S.i(f'v_fma_f32 v10, v{c+2*h}, v{g+2*h}, v10'); S.i(f'v_fma_f32 v11, v{c+2*h+1}, v{g+2*h+1}, v11')
            S.i(f'v_cvt_pk_bf16_f32 v{x+h}, v10, v11')
        S.vm(f'buffer_store_dwordx2 v[{x}:{x+1}], {"v6" if t < 4 else "v7"}, s[16:19], s33 offen offset:{(t%4)*1024}' + common.STF['k3'], ('st', t))
        if t == 3: S.i('s_add_u32 s33, s33, 4096')
    if common.STAMP: S.i(stamp(4, vt=2))
    r = resolve([('p', [S])])
    a('\n'.join(r['p']))
    a(f'{name}_end:')
    return kernel(name, '\n'.join(P), 192, 192)
```

```python
import common
from common import *
from emit import *

WS_MOD = 0
WS_XH = 0x10000
WS_WQ = 0x260000
WS_WO = 0x460000
WS_O = 0x520000
WS_X1 = 0x770000
WS_PART = 0xA00000
XBYTES = 2048 * 576 * 2
WS_SIZE = 0x10000000

RING = 0
HH = 18 * 4096
MISC = HH + 72 * 1024
LDS_K4 = MISC + 2 * 2304 + 2048
HALF = 9 * 4096
DUMMY = MISC + 2 * 2304 + 2048
LDS_K4 = MISC + 5120 + 2048
PREFETCH = True
PF_AT = 1
ABL = set()
XF = ''
LOOK = 14
ACC = 128
def bfrag(fi):
    return f'a[{4*fi}:{4*fi+3}]' if fi < 64 else f'v[{224+4*(fi-64)}:{224+4*(fi-64)+3}]'
def afrag(i):
    return 96 + 4 * (i % 8)
def acc(X, mi):
    return ACC + 32 * X + 16 * mi
ROW1 = 16 * 9216
ROW2 = 16 * 1152

def gen_k4(name):
    P = []; a = P.append
    a('  s_cmp_ge_u32 s2, 256')
    a(f'  s_cbranch_scc1 {name}_end')
    a(stamp_init()); a(stamp(0, True))
    a('  s_load_dwordx4 s[4:7], s[0:1], 32')
    a('  s_load_dwordx2 s[32:33], s[0:1], 48')
    a('  s_load_dwordx2 s[34:35], s[0:1], 88')
    a('  v_lshrrev_b32 v10, 6, v0')
    a('  v_and_b32 v1, 63, v0')
    a('  v_readfirstlane_b32 s20, v10')
    a(wgmap(common.MAP['k4']))
    a('  s_waitcnt lgkmcnt(0)')
    a('  s_cmp_ge_u32 s20, 2')
    a('  s_cselect_b32 s4, s6, s4')
    a('  s_cselect_b32 s5, s7, s5')
    a(srd(8, 4, 576 * 4608 * 2))
    a(srd(12, 32, 4608 * 576 * 2))
    a(srd(16, 34, WS_SIZE))
    a(srd(28, 4, 576 * 4608 * 2))
    a('  s_lshl_b32 s23, s20, 10')
    a('  v_lshrrev_b32 v10, 3, v1')
    a('  s_and_b32 s36, s20, 1')
    a('  s_lshl_b32 s36, s36, 3')
    a('  v_add_u32 v10, s36, v10')
    a('  v_and_b32 v11, 2, v10')
    a('  s_lshr_b32 s37, s20, 1')
    a('  s_lshl_b32 s37, s37, 2')
    a('  v_or_b32 v11, s37, v11')
    a('  v_and_b32 v12, 7, v1')
    a('  v_xor_b32 v12, v12, v11')
    a('  v_mul_u32_u24 v10, 9216, v10')
    a('  v_lshl_add_u32 v5, v12, 4, v10')
    a('  v_lshrrev_b32 v10, 4, v1')
    a('  v_bfe_u32 v11, v1, 2, 2')
    a('  v_xor_b32 v11, v11, v10')
    a('  v_and_b32 v12, 3, v1')
    a('  v_lshl_add_u32 v11, v11, 2, v12')
    a('  s_lshl_b32 s36, s20, 2')
    a('  v_add_u32 v10, s36, v10')
    a('  v_mul_u32_u24 v10, 1152, v10')
    a('  v_lshl_add_u32 v6, v11, 4, v10')
    a('  v_lshrrev_b32 v10, 3, v1')
    a('  v_bfe_u32 v11, v1, 1, 2')
    a('  v_bfe_u32 v12, v10, 1, 1')
    a('  v_lshlrev_b32 v12, 1, v12')
    a('  v_xor_b32 v11, v11, v12')
    a('  v_and_b32 v12, 1, v1')
    a('  v_lshl_add_u32 v11, v11, 1, v12')
    a('  s_lshl_b32 s36, s20, 3')
    a('  v_add_u32 v10, s36, v10')
    a('  v_mul_u32_u24 v10, 1152, v10')
    a('  v_lshl_add_u32 v7, v11, 4, v10')
    a('  v_lshrrev_b32 v10, 4, v1')
    a('  v_bfe_u32 v11, v1, 2, 2')
    a('  v_and_b32 v12, 3, v1')
    a('  v_and_b32 v13, 1, v10')
    a('  v_lshrrev_b32 v14, 1, v10')
    a('  v_lshl_add_u32 v14, v14, 3, v11')
    a('  v_lshlrev_b32 v14, 7, v14')
    a('  v_lshl_add_u32 v14, v13, 11, v14')
    a('  v_lshrrev_b32 v15, 1, v11')
    a('  v_lshl_add_u32 v15, v13, 1, v15')
    a('  v_xor_b32 v15, s20, v15')
    a('  v_lshl_add_u32 v14, v15, 5, v14')
    a('  v_lshl_add_u32 v2, v12, 3, v14')
    a('  v_lshrrev_b32 v14, 1, v10')
    a('  v_lshl_add_u32 v14, v14, 2, v11')
    a('  v_lshlrev_b32 v14, 8, v14')
    a('  v_xor_b32 v15, s20, v11')
    a('  v_lshl_add_u32 v14, v15, 6, v14')
    a('  v_lshl_add_u32 v14, v13, 5, v14')
    a('  v_lshl_add_u32 v3, v12, 3, v14')
    a('  v_lshrrev_b32 v14, 1, v10')
    a('  v_lshl_add_u32 v14, v14, 2, v11')
    a('  v_lshlrev_b32 v14, 7, v14')
    a('  v_lshrrev_b32 v15, 1, v11')
    a('  s_lshr_b32 s36, s20, 1')
    a('  v_xor_b32 v15, s36, v15')
    a('  v_lshl_add_u32 v14, v15, 6, v14')
    a('  v_lshl_add_u32 v14, v13, 5, v14')
    a('  v_lshl_add_u32 v4, v12, 3, v14')
    a('  v_lshlrev_b32 v9, 4, v1')
    a(f'  v_add_u32 v90, {HALF}, v2'); a(f'  v_add_u32 v91, {HALF}, v3'); a(f'  v_add_u32 v92, {HALF}, v4')
    a(f'  v_add_u32 v93, {HH}, v9'); a(f'  v_add_u32 v94, {HH + 65536}, v9')
    a('  s_lshl_b32 s36, s20, 11')
    a(f'  s_add_u32 s36, s36, {HH}')
    a('  v_add_u32 v8, s36, v9')
    a('  s_mul_i32 s24, s22, 1152')
    a(f'  s_mul_i32 s38, s22, {576*1152}')
    a(f'  s_add_u32 s39, s38, 1024')
    a('  s_lshl_b32 s26, s22, 5'); a('  s_add_u32 s26, s26, s21')
    a(f'  s_mul_i32 s26, s26, {18*4*1024}')
    a(f'  s_add_u32 s26, s26, {WS_PART}')
    pre = '\n'.join(P)

    def inc_to(t):
        if t == 0: return 's_nop 0'
        if t < 324:
            return f's_sub_u32 s24, s24, {35*ROW1 - 128}' if t % 36 == 0 else f's_add_u32 s24, s24, {ROW1}'
        if t == 324: return 's_mov_b32 s24, s38'
        if t < 468:
            return f's_sub_u32 s24, s24, {35*ROW2 - 256}' if (t - 324) % 36 == 0 else f's_add_u32 s24, s24, {ROW2}'
        if t == 468: return 's_mov_b32 s24, s39'
        return f's_add_u32 s24, s24, {2*ROW2}'
    def dma_step(S, t):
        if t > 485: return
        srdr, vo = ('s[8:11]', 'v5') if t < 324 else ('s[12:15]', 'v6') if t < 468 else ('s[12:15]', 'v7')
        S.i(f's_add_u32 m0, s23, {RING + (t % 18) * 4096}')
        S.i(inc_to(t))
        S.vm(f'buffer_load_dwordx4 {vo}, {srdr}, s24 offen lds' if ('nodma' not in ABL or t < LOOK) else 's_nop 0', ('dma', t))
    def slot(t, lo, hi):
        k = t % 18
        return (lo, k * 4096) if k < 9 else (hi, (k - 9) * 4096)
    def rd(S, t):
        if t > 485: return
        if 'nord' in ABL and t > 1:
            for q in range(4): S.lg('s_nop 0', ('a', t, q)) if (q < 2 or t >= 468) else None
            return
        if t < 324:
            f = afrag(t % 4); v, o = slot(t, 'v2', 'v90')
            S.lg(f'ds_read_b64_tr_b16 v[{f}:{f+1}], {v} offset:{o}', ('a', t, 0))
            S.lg(f'ds_read_b64_tr_b16 v[{f+2}:{f+3}], {v} offset:{o+512}', ('a', t, 1))
        elif t < 468:
            f = afrag(t % 4); v, o = slot(t, 'v3', 'v91')
            S.lg(f'ds_read_b64_tr_b16 v[{f}:{f+1}], {v} offset:{o}', ('a', t, 0))
            S.lg(f'ds_read_b64_tr_b16 v[{f+2}:{f+3}], {v} offset:{o+2048}', ('a', t, 1))
        else:
            v, o = slot(t, 'v4', 'v92')
            for h in range(2):
                f = afrag(2 * t + h)
                S.lg(f'ds_read_b64_tr_b16 v[{f}:{f+1}], {v} offset:{o+h*2048}', ('a', t, 2*h))
                S.lg(f'ds_read_b64_tr_b16 v[{f+2}:{f+3}], {v} offset:{o+h*2048+1024}', ('a', t, 2*h+1))
    def rdb(S, fi, tag):
        v, o = ('v93', fi * 1024) if fi < 64 else ('v94', (fi - 64) * 1024)
        S.lg(f'ds_read_b128 {bfrag(fi)}, {v} offset:{o}', tag)
    def sync(S, tau):
        if (tau + 2) % 3 == 0:
            j = (tau + 2) // 3
            if 3 * j <= 485:
                if 'novm' not in ABL: S.wait(vm=('dma', min(3 * j + 2, 485)))
                if 'nobar' not in ABL: S.i('s_barrier')

    S0 = Seq()
    S0.i(f's_add_u32 m0, s23, {MISC}'); S0.i(f's_add_u32 s42, s23, {WS_MOD + 3*2304}')
    S0.vm('buffer_load_dwordx4 v9, s[16:19], s42 offen lds', ('mod', 0))
    S0.i(f's_mov_b32 m0, {MISC + 4096}'); S0.i(f's_mov_b32 s42, {WS_MOD + 3*2304 + 4096}')
    S0.vm('buffer_load_dwordx4 v9, s[16:19], s42 offen lds', ('mod', 1))
    S0.i('s_lshl_b32 s40, s21, 1'); S0.i('s_mul_i32 s40, s40, 36'); S0.i('s_mul_i32 s41, s20, 9'); S0.i('s_add_u32 s40, s40, s41')
    S0.i('s_lshl_b32 s40, s40, 10'); S0.i(f's_add_u32 s40, s40, {WS_X1}'); S0.i(f's_add_u32 s41, s40, {36*1024}')
    XB = lambda mi, k: 16 + 36 * mi + 4 * k
    for k in range(9):
        for mi in range(2):
            S0.vm(f'buffer_load_dwordx4 v[{XB(mi,k)}:{XB(mi,k)+3}], v9, s[16:19], s{40+mi} offen offset:{(k%4)*1024}' + XF, ('x1', k, mi))
        if k % 4 == 3: S0.i('s_add_u32 s40, s40, 4096'); S0.i('s_add_u32 s41, s41, 4096')
    for t in range(LOOK):
        dma_step(S0, t)
    S0.wait(vm=('mod', 1)); S0.i('s_barrier')
    S0.i('v_lshrrev_b32 v12, 5, v1'); S0.i('v_lshlrev_b32 v12, 5, v12')
    S0.i(f's_mul_i32 s36, s20, {9*64}'); S0.i(f's_add_u32 s36, s36, {MISC}'); S0.i('v_add_u32 v12, s36, v12')
    CS = lambda k: 96 + 16 * k if k < 8 else 224
    for k in range(9):
        for q, o in enumerate((2304, 2320, 0, 16)):
            S0.lg(f'ds_read_b128 v[{CS(k)+4*q}:{CS(k)+4*q+3}], v12 offset:{k*64+o}', ('c', k, q))
    if common.STAMP: S0.i(stamp(2))
    for r in range(4): S0.i(f'v_mov_b32 v{240+r}, 0')
    S0.i('v_mov_b32 v14, 0x3f803f80')
    for k in range(9):
        for mi in range(2):
            S0.wait(vm=('x1', k, mi))
            for j in range(4):
                S0.i(f'v_dot2c_f32_bf16 v{240+2*mi}, v{XB(mi,k)+j}, v14')
                S0.i(f'v_dot2c_f32_bf16 v{241+2*mi}, v{XB(mi,k)+j}, v{XB(mi,k)+j}')
    if common.STAMP: S0.i(stamp(6))
    S0.i('s_nop 2')
    for r in range(4): S0.i(f'v_mov_b32 v{244+r}, v{240+r}')
    S0.i('s_nop 1')
    for r in range(4): S0.i(f'v_permlane32_swap_b32 v{244+r}, v{240+r}')
    S0.i('s_nop 1')
    for r in range(4): S0.i(f'v_add_f32 v{240+r}, v{244+r}, v{240+r}')
    STATS = MISC + 5120
    S0.i('v_and_b32 v10, 31, v1'); S0.i('v_lshlrev_b32 v10, 4, v10'); S0.i(f'v_add_u32 v10, {STATS}, v10')
    S0.i('s_lshl_b32 s36, s20, 9'); S0.i('v_add_u32 v11, s36, v10')
    S0.lg('ds_write_b128 v11, v[240:243]', ('sw', 0))
    S0.wait(lg='all'); S0.i('s_barrier')
    for w in range(4): S0.lg(f'ds_read_b128 v[{240+4*w}:{243+4*w}], v10 offset:{w*512}', ('sr', w))
    S0.wait(lg='all')
    for r in range(4):
        S0.i(f'v_add_f32 v{240+r}, v{240+r}, v{244+r}'); S0.i(f'v_add_f32 v{248+r}, v{248+r}, v{252+r}'); S0.i(f'v_add_f32 v{240+r}, v{240+r}, v{248+r}')
    for mi in range(2):
        m, q = 240 + 2 * mi, 241 + 2 * mi
        S0.i(f'v_mul_f32 v{m}, 0x3ae38e39, v{m}'); S0.i(f'v_mul_f32 v{q}, 0x3ae38e39, v{q}')
        S0.i(f'v_fma_f32 v{q}, -v{m}, v{m}, v{q}'); S0.i(f'v_max_f32 v{q}, 0, v{q}'); S0.i(f'v_add_f32 v{q}, 0x3727c5ac, v{q}')
        S0.i(f'v_rsq_f32 v{q}, v{q}'); S0.i('s_nop 0')
        S0.i(f'v_mul_f32 v{m}, v{m}, v{q}'); S0.i(f'v_sub_f32 v{m}, 0, v{m}')
        S0.i(f'v_mov_b32 v{244+4*mi}, v{q}'); S0.i(f'v_mov_b32 v{245+4*mi}, v{q}')
        S0.i(f'v_mov_b32 v{246+4*mi}, v{m}'); S0.i(f'v_mov_b32 v{247+4*mi}, v{m}')
    S0.i('s_mul_i32 s36, s20, 18'); S0.i('s_lshl_b32 s36, s36, 10'); S0.i(f's_add_u32 s36, s36, {HH}')
    S0.i('v_add_u32 v13, s36, v9')
    TP = [240, 242, 252, 254]
    for k in range(9):
        for mi in range(2):
            b = XB(mi, k); c0 = CS(k)
            for j in range(4):
                S0.i(f'v_lshlrev_b32 v{TP[j]}, 16, v{b+j}'); S0.i(f'v_and_b32 v{TP[j]+1}, 0xffff0000, v{b+j}')
            for j in range(4):
                S0.i(f'v_pk_fma_f32 v[{TP[j]}:{TP[j]+1}], v[{TP[j]}:{TP[j]+1}], v[{244+4*mi}:{245+4*mi}], v[{246+4*mi}:{247+4*mi}]')
            for j in range(4):
                S0.i(f'v_pk_fma_f32 v[{TP[j]}:{TP[j]+1}], v[{TP[j]}:{TP[j]+1}], v[{c0+2*j}:{c0+2*j+1}], v[{c0+8+2*j}:{c0+8+2*j+1}]')
            for j in range(4):
                S0.i(f'v_cvt_pk_bf16_f32 v{b+j}, v{TP[j]}, v{TP[j]+1}')
            S0.lg(f'ds_write_b128 v13, v[{b}:{b+3}] offset:{(2*k+mi)*1024}', ('hw', k, mi))
    S0.wait(lg='all')
    if common.STAMP: S0.i(stamp(7))
    S0.wait(vm=('dma', 2))
    S0.i('s_barrier')
    for fi in range(72): rdb(S0, fi, ('hr', fi))
    S0.wait(lg='all')
    rd(S0, 0); rd(S0, 1)
    S0.i('s_mov_b32 s25, 0'); S0.i('s_mov_b32 s46, 0')
    if PREFETCH:
        A = common.MAP['k4']; sh = 32 // A
        S0.i(f's_and_b32 s36, s21, {sh - 1}')
        S0.i(f's_mul_i32 s37, s36, {18 * A}'); S0.i('s_and_b32 s56, s20, 1'); S0.i(f's_mul_i32 s56, s56, {9 * A}'); S0.i('s_add_u32 s37, s37, s56')
        S0.i('v_add_u32 v95, s37, v1'); S0.i('v_mul_u32_u24 v95, 9216, v95')
        S0.i('v_mov_b32 v15, 0x7ff00000'); S0.i(f'v_cmp_gt_u32 vcc, {9 * A}, v1'); S0.i('v_cndmask_b32 v95, v15, v95, vcc')
        S0.i('s_mul_i32 s56, s22, 1152'); S0.i('s_add_u32 s56, s56, 256')
        S0.i(f's_mul_i32 s37, s36, {162 * A}'); S0.i(f's_mul_i32 s57, s20, {27 * A // 2}'); S0.i('s_add_u32 s37, s37, s57')
        S0.i('v_add_u32 v14, s37, v1'); S0.i('v_lshlrev_b32 v14, 7, v14')
        S0.i(f'v_cmp_gt_u32 vcc, {27 * A // 2}, v1'); S0.i('v_cndmask_b32 v14, v15, v14, vcc')
        S0.i('s_mov_b32 s57, s38')
    if common.STAMP: S0.i(stamp(1))

    def epi1(S, X, tag):
        L = []
        for mi in range(2):
            c = acc(X, mi); t = 64 + 4 * mi
            for r in range(8):
                L.append(lambda c=c, r=r: S.i(f'v_mul_f32 v{c+r}, v{c+r}, v{c+8+r}'))
            for j in range(4):
                L.append(lambda c=c, j=j, t=t: S.i(f'v_cvt_pk_bf16_f32 v{t+j}, v{c+2*j}, v{c+2*j+1}'))
            L.append(lambda t=t, mi=mi: S.lg(f'ds_write_b128 v8, v[{t}:{t+3}] offset:{mi*1024}', ('hhw', tag, mi)))
        L.append(lambda: S.i('v_add_u32 v8, s46, v8'))
        L.append(lambda: S.i('s_mov_b32 s46, 0x2000'))
        return L
    def epi2(S, X, soff, tag, single=False):
        L = []
        for mi in range(1 if single else 2):
            c = acc(X, mi); t = 64 + 8 * mi
            for j in range(8):
                L.append(lambda c=c, j=j, t=t: S.i(f'v_cvt_pk_bf16_f32 v{t+j}, v{c+2*j}, v{c+2*j+1}'))
            for st in range(2):
                off = (mi * 2 + st) * 1024
                L.append(lambda t=t, st=st, off=off, mi=mi: S.vm(f'buffer_store_dwordx4 v[{t+4*st}:{t+4*st+3}], v9, s[16:19], {soff} offen offset:{off}' + common.STF['k4'], ('st', tag, mi, st)))
        return L

    def p1_steps(S, tau0, nsteps, last=False):
        pend = []
        for u in range(nsteps):
            tau = tau0 + u; s = tau % 36; X = (tau // 36) % 3
            if s == 3: pend = epi1(S, (X + 2) % 3, tau)
            if PREFETCH and s == PF_AT:
                b = tau // 36
                if b <= 6:
                    S.vm('buffer_load_dword v15, v95, s[8:11], s56 offen', ('pf', tau)); S.i('s_add_u32 s56, s56, 128')
                if b >= 6:
                    S.vm('buffer_load_dword v15, v14, s[12:15], s57 offen', ('pfd', tau)); S.i(f's_add_u32 s57, s57, {54 * common.MAP["k4"] * 128}')
            sync(S, tau)
            S.wait(lg=('a', tau, 1))
            for mi in range(2):
                c = acc(X, mi); f = afrag(tau % 4)
                src = '0' if s == 0 else f'v[{c}:{c+15}]'
                S.i(f'v_mfma_f32_32x32x16_bf16 v[{c}:{c+15}], v[{f}:{f+3}], {bfrag(2*s+mi)}, {src}')
                if mi == 0: rd(S, tau + 2)
                else: dma_step(S, tau + LOOK)
                if last and tau >= 288 and s < 32: rdb(S, 2 * s + mi, ('hb', s, mi))
                for _ in range(2):
                    if pend: pend.pop(0)()
        assert not pend
    body1 = []
    for it in range(2):
        S = Seq(); p1_steps(S, 108 * it, 108)
        S.i('s_add_u32 s25, s25, 1'); S.i('s_cmp_lt_u32 s25, 2'); S.i(f's_cbranch_scc1 {name}_p1')
        body1.append(S)
    T = Seq()
    p1_steps(T, 216, 108, last=True)
    if common.STAMP: T.i(stamp(3))
    T.i('s_lshl_b32 s27, s20, 12'); T.i('s_add_u32 s27, s27, s26')
    pend = []
    def p2_full():
        nonlocal pend
        for tau in range(324, 468):
            nb = (tau - 324) // 36; s = (tau - 324) % 36; X = nb % 2
            if tau == 327: pend = epi1(T, 2, tau)
            elif s == 3:
                pend = epi2(T, 1 - X, 's27', nb - 1) + [lambda: T.i('s_add_u32 s27, s27, 0x4000')]
            sync(T, tau)
            T.wait(lg=('a', tau, 1))
            if nb == 0 and s < 32: T.wait(lg=('hb', s, 1))
            if s >= 32 and nb == 0: T.wait(lg=('hb', s, 1))
            for mi in range(2):
                c = acc(X, mi); f = afrag(tau % 4)
                src = '0' if s == 0 else f'v[{c}:{c+15}]'
                T.i(f'v_mfma_f32_32x32x16_bf16 v[{c}:{c+15}], v[{f}:{f+3}], {bfrag(2*s+mi)}, {src}')
                if mi == 0: rd(T, tau + 2)
                else: dma_step(T, tau + LOOK)
                if nb == 0 and 20 <= s < 24: rdb(T, 2 * (s + 12) + mi, ('hb', s + 12, mi))
                for _ in range(2):
                    if pend: pend.pop(0)()
            assert not (nb == 0 and s == 19 and pend)
    p2_full()
    assert not pend
    T.i('s_lshr_b32 s36, s20, 1'); T.i('s_add_u32 s36, s36, 16'); T.i('s_lshl_b32 s36, s36, 12')
    T.i('s_and_b32 s37, s20, 1'); T.i('s_lshl_b32 s37, s37, 11')
    T.i('s_add_u32 s36, s36, s37'); T.i('s_add_u32 s47, s36, s26')
    T.i('s_bitcmp1_b32 s20, 0'); T.i(f's_cbranch_scc1 {name}_h1')
    halves = []
    for par in range(2):
        H = Seq(); pend = []
        for tau in range(468, 486):
            u = tau - 468
            if u == 2: pend = epi2(H, 1, 's27', 3)
            sync(H, tau)
            for h in range(2):
                H.wait(lg=('a', tau, 2 * h + 1))
                c = acc(0, 0); f = afrag(2 * tau + h); s = 2 * u + h
                src = '0' if s == 0 else f'v[{c}:{c+15}]'
                H.i(f'v_mfma_f32_32x32x16_bf16 v[{c}:{c+15}], v[{f}:{f+3}], {bfrag(2*s+par)}, {src}')
                if h == 0: rd(H, tau + 2)
                else: dma_step(H, tau + LOOK)
                for _ in range(2):
                    if pend: pend.pop(0)()
        assert not pend
        H.i('s_nop 15')
        for x in epi2(H, 0, 's47', 4, single=True): x()
        if common.STAMP: H.i(stamp(4))
        H.i('s_waitcnt vmcnt(0)')
        if common.STAMP: H.i(stamp(5))
        if par == 0: H.i(f's_branch {name}_end')
        halves.append(H)
    r = resolve([('p', [S0]), ('b1', body1), ('t', [T]), ('h0', [halves[0]])])
    r2 = resolve([('p', [S0]), ('b1', body1), ('t', [T]), ('h1', [halves[1]])])
    for k in ('p', 'b1', 't'): assert r[k] == r2[k]
    code = pre + '\n' + '\n'.join(r['p']) + f'\n{name}_p1:\n' + '\n'.join(r['b1']) + '\n' + '\n'.join(r['t']) + '\n' + \
        '\n'.join(r['h0']) + f'\n{name}_h1:\n' + '\n'.join(r2['h1']) + f'\n{name}_end:'
    return kernel(name, code, 512, 256)
```

```python
from k4 import *
def gen_k5(name):
    P = []; a = P.append
    a('  s_cmp_ge_u32 s2, 288'); a(f'  s_cbranch_scc1 {name}_end')
    a(stamp_init()); a(stamp(0, vt=2))
    a('  s_load_dwordx2 s[4:5], s[0:1], 72')
    a('  s_load_dwordx2 s[6:7], s[0:1], 88')
    a('  v_lshrrev_b32 v10, 6, v0'); a('  v_and_b32 v1, 63, v0'); a('  v_readfirstlane_b32 s20, v10')
    a('  s_waitcnt lgkmcnt(0)')
    a(srd(8, 4, XBYTES)); a(srd(16, 6, WS_SIZE))
    a('  s_lshl_b32 s21, s2, 2'); a('  s_add_u32 s21, s21, s20')
    a('  s_and_b32 s22, s21, 1')
    a('  s_lshr_b32 s23, s21, 1')
    a('  s_mul_hi_u32 s24, s23, 238609295')
    a('  s_mul_i32 s25, s24, 18'); a('  s_sub_u32 s25, s23, s25')
    a('  v_lshlrev_b32 v9, 4, v1')
    a(f'  s_lshl_b32 s26, s21, 11'); a(f'  s_add_u32 s26, s26, {WS_PART}')
    for f in range(8):
        for st in range(2):
            a(f'  buffer_load_dwordx4 v[{16+8*f+4*st}:{16+8*f+4*st+3}], v9, s[16:19], s26 offen offset:{st*1024}')
        if f < 7: a(f'  s_add_u32 s26, s26, {32*18*4*1024}')
    a('  s_lshl_b32 s27, s24, 1'); a('  s_add_u32 s27, s27, s22')
    a('  s_mul_i32 s28, s27, 36'); a('  s_lshl_b32 s29, s25, 1'); a('  s_add_u32 s28, s28, s29')
    a('  s_lshl_b32 s28, s28, 10'); a(f'  s_add_u32 s28, s28, {WS_X1}')
    a('  v_and_b32 v2, 31, v1'); a('  v_lshrrev_b32 v3, 5, v1')
    a('  v_lshlrev_b32 v4, 4, v2'); a('  v_lshl_add_u32 v4, v3, 3, v4')
    for j in range(4):
        a(f'  buffer_load_dwordx2 v[{80+2*j}:{80+2*j+1}], v4, s[16:19], s28 offen offset:{j*512}')
    a('  s_lshl_b32 s30, s25, 7'); a(f'  s_add_u32 s30, s30, {WS_MOD + 5*2304}')
    a('  v_lshlrev_b32 v5, 4, v3')
    for j in range(4):
        a(f'  buffer_load_dwordx4 v[{88+4*j}:{88+4*j+3}], v5, s[16:19], s30 offen offset:{j*32}')
    for f in range(8):
        a(f'  s_waitcnt vmcnt({8 + 2*(7-f)})')
        for d in range(8):
            src = 16 + 8*f + d
            if f == 0:
                a(f'  v_lshlrev_b32 v{104+2*d}, 16, v{src}'); a(f'  v_and_b32 v{105+2*d}, 0xffff0000, v{src}')
            else:
                a(f'  v_lshlrev_b32 v2, 16, v{src}'); a(f'  v_and_b32 v3, 0xffff0000, v{src}')
                a(f'  v_add_f32 v{104+2*d}, v{104+2*d}, v2'); a(f'  v_add_f32 v{105+2*d}, v{105+2*d}, v3')
    a('  s_waitcnt vmcnt(0)')
    for d in range(8):
        j = d >> 1; r = 2 * (d & 1); x = 80 + 2*j + (d & 1); g = 88 + 4*j + r
        a(f'  v_lshlrev_b32 v2, 16, v{x}'); a(f'  v_and_b32 v3, 0xffff0000, v{x}')
        a(f'  v_fma_f32 v2, v{104+2*d}, v{g}, v2'); a(f'  v_fma_f32 v3, v{105+2*d}, v{g+1}, v3')
        a(f'  v_cvt_pk_bf16_f32 v{16+d}, v2, v3')
    a('  s_nop 1')
    for jp in range(2):
        b = 16 + 4*jp
        a(f'  v_permlane32_swap_b32 v{b}, v{b+2}'); a(f'  v_permlane32_swap_b32 v{b+1}, v{b+3}')
    a('  v_and_b32 v2, 31, v1'); a('  v_lshrrev_b32 v3, 5, v1')
    a('  v_mul_u32_u24 v4, 1152, v2'); a('  v_lshl_add_u32 v4, v3, 4, v4')
    a('  s_mul_i32 s31, s27, 36864'); a('  s_lshl_b32 s29, s25, 6'); a('  s_add_u32 s31, s31, s29')
    for jp in range(2):
        a(f'  buffer_store_dwordx4 v[{16+4*jp}:{16+4*jp+3}], v4, s[8:11], s31 offen offset:{jp*32}')
    a('  s_waitcnt vmcnt(0)')
    a(stamp(5, vt=2))
    a(f'{name}_end:')
    return kernel(name, '\n'.join(P), 128, 128)
```

```python
import sys, common
common.STAMP = 'stamp' in sys.argv
import k4
common.STF['k4'] = ' sc1'; common.MAP['k4'] = 2
out = 'tall.s'; which = '12345'
for x in sys.argv[1:]:
    if x.startswith('abl='): k4.ABL.update(x[4:].split(','))
    if x.startswith('map='):
        k_, v_ = x[4:].split(':'); common.MAP[k_] = int(v_)
    if x.startswith('stf='):
        k_, v_ = x[4:].split(':'); common.STF[k_] = ' ' + v_.replace('+', ' ')
    if x == 'nopf':
        import k2; k2.PREFETCH = False
    if x.startswith('pfs='):
        import k2; k2.PF_STEP = int(x[4:])
    if x.startswith('pfn='):
        import k2; k2.PF_N = int(x[4:])
    if x == 'nowd':
        import k3; k3.PF_WD = False
    if x.startswith('out='): out = x[4:]
    if x.startswith('k='): which = x[2:]
L = []; K = []
if '1' in which:
    import k1; K.append(k1.gen_k1('k1_kernel')); L.append(('k1_kernel', k1.K1_GRID, 256, 512))
if '2' in which:
    import k2; K.append(k2.gen_k2('k2_kernel')); L.append(('k2_kernel', 256, 256, k2.LDS_K2))
if '3' in which:
    import k3; K.append(k3.gen_k3('k3_kernel')); L.append(('k3_kernel', 256, 256, k3.LDS_K3))
if '4' in which:
    K.append(k4.gen_k4('k4_kernel')); L.append(('k4_kernel', 256, 256, k4.LDS_K4))
if '5' in which:
    import k5; K.append(k5.gen_k5('k5_kernel')); L.append(('k5_kernel', 288, 256, 0))
common.build(out, L, K); common.assemble(out); print('ok', out)
```
